```python
import torch

def _softmax(x, axis=-1):
    return torch.softmax(x, dim=axis)
def _gelu(x):
    return torch.nn.functional.gelu(x, approximate="tanh")
def _silu(x):
    return torch.nn.functional.silu(x)
def _sigmoid(x):
    return torch.sigmoid(x)
def _layernorm(x, axis=-1, eps=1e-5):
    m = x.mean(dim=axis, keepdim=True)
    v = x.var(dim=axis, keepdim=True, unbiased=False)
    return (x - m) / torch.sqrt(v + eps)
def _scatter_add(tgt, idx, src, axis=0):
    return tgt.clone().index_add_(axis, idx, src)
def _segment_sum(src, seg, n):
    out = torch.zeros((n,) + src.shape[1:], dtype=src.dtype)
    return out.index_add_(0, seg, src)
def _pad(x, pw):
    flat = tuple(v for pair in reversed(pw) for v in pair)
    return torch.nn.functional.pad(x, flat)

kernel_name = 'parallel_sum__ssm_conv_s4__dense_activation_squared_relu__prompt'

def setup_inputs():

    _w = (lambda a: (lambda t: t.to(torch.bfloat16) if t.is_floating_point() else t)(torch.as_tensor(a)))
    def _A_setup():
        B, L, D, N = 1, 2048, 512, 128
        A_re = -(lambda _x: torch.exp(torch.as_tensor(_x)))((lambda *s: torch.randn(*s, dtype=torch.bfloat16) * 3.2)(D, N))
        A_im = torch.pi * (lambda *s: torch.randn(*s, dtype=torch.bfloat16) * 0.2)(D, N)
        B_re = (lambda *s: torch.randn(*s, dtype=torch.bfloat16) * 0.4)(D, N)
        B_im = (lambda *s: torch.randn(*s, dtype=torch.bfloat16) * 0.4)(D, N)
        C_re = (lambda *s: torch.randn(*s, dtype=torch.bfloat16) * 0.4)(D, N)
        C_im = (lambda *s: torch.randn(*s, dtype=torch.bfloat16) * 0.4)(D, N)
        log_dt = (lambda *s: torch.randn(*s, dtype=torch.bfloat16) * 0.2)(D) * 0.5 - 4.0
        Dskip = (lambda *s: torch.randn(*s, dtype=torch.bfloat16) * 0.4)(D)
        return {
            "u": _w((lambda *s: torch.randn(*s, dtype=torch.bfloat16) * 0.05)(B, L, D)),
            "A_re": _w(A_re),
            "A_im": _w(A_im),
            "B_re": _w(B_re),
            "B_im": _w(B_im),
            "C_re": _w(C_re),
            "C_im": _w(C_im),
            "log_dt": _w(log_dt),
            "Dskip": _w(Dskip),
        }
    _A_in = _A_setup()

    def _B_setup():
        B, S, D, F = 1, 2048, 512, 1792
        return {
            "x": _w((lambda *s: torch.randn(*s, dtype=torch.bfloat16) * 0.05)(B, S, D)),
            "w1": _w((lambda *s: torch.randn(*s, dtype=torch.bfloat16) * 0.05)(D, F)),
            "b1": _w((lambda *s: torch.randn(*s, dtype=torch.bfloat16) * 0.2)(F)),
            "w2": _w((lambda *s: torch.randn(*s, dtype=torch.bfloat16) * 0.05)(F, D)),
            "b2": _w((lambda *s: torch.randn(*s, dtype=torch.bfloat16) * 0.8)(D)),
        }
    _B_in = _B_setup()

    return {
        "A_u": _A_in["u"],
        "A_A_re": _A_in["A_re"],
        "A_A_im": _A_in["A_im"],
        "A_B_re": _A_in["B_re"],
        "A_B_im": _A_in["B_im"],
        "A_C_re": _A_in["C_re"],
        "A_C_im": _A_in["C_im"],
        "A_log_dt": _A_in["log_dt"],
        "A_Dskip": _A_in["Dskip"],
        "B_x": _B_in["x"],
        "B_w1": _B_in["w1"],
        "B_b1": _B_in["b1"],
        "B_w2": _B_in["w2"],
        "B_b2": _B_in["b2"],
    }

def reference(A_u, A_A_re, A_A_im, A_B_re, A_B_im, A_C_re, A_C_im, A_log_dt, A_Dskip, B_x, B_w1, B_b1, B_w2, B_b2):
    def _A_ref(u, A_re, A_im, B_re, B_im, C_re, C_im, log_dt, Dskip):
        Bsz, L, D = u.shape
        dt = torch.exp(log_dt)[:, None]
        A = A_re + 1j * A_im
        Bc = B_re + 1j * B_im
        Cc = C_re + 1j * C_im
        logdA = dt * A
        dB = dt * Bc
        l = (lambda x, dt: x.to(dt))(torch.arange(L), A_re.dtype)
        P = torch.exp(logdA[:, :, None] * l[None, None, :])
        K = torch.einsum("dn,dnl,dn->dl", Cc, P, dB).real
        L2 = 2 * L
        Kp = _pad(K, ((0, 0), (0, L)))
        up = (lambda x, *d: x.permute(*d))(u, 0, 2, 1)
        up = _pad(up, ((0, 0), (0, 0), (0, L)))
        Kf = (lambda x, axes=(-2,-1): torch.fft.rfft2(x.float(), dim=axes))(Kp[:, None, :], axes=(-2, -1))
        Uf = (lambda x, axes=(-2,-1): torch.fft.rfft2(x.float(), dim=axes))(up[:, :, None, :], axes=(-2, -1))
        Yf = Uf * Kf[None, :, :, :]
        y = (lambda x, s, axes=(-2,-1): torch.fft.irfft2(x, s=s, dim=axes).to(torch.bfloat16))(Yf, (1, L2), axes=(-2, -1))[:, :, 0, :L]
        y = (lambda x, *d: x.permute(*d))(y, 0, 2, 1) + u * Dskip[None, None, :]
        return y

    def _B_ref(x, w1, b1, w2, b2):
        h = torch.einsum("bsd,df->bsf", x, w1) + b1
        zero = torch.zeros_like(h)
        r = torch.where(h > zero, h, zero)
        h = r * r
        out = torch.einsum("bsf,fd->bsd", h, w2) + b2
        return out

    x = A_u
    xn = _layernorm(x, axis=-1)
    return x + _A_ref(xn, A_A_re, A_A_im, A_B_re, A_B_im, A_C_re, A_C_im, A_log_dt, A_Dskip) + _B_ref(xn, B_w1, B_b1, B_w2, B_b2)
```

```python
NAME = "parallel_sum__ssm_conv_s4__dense_activation_squared_relu__prompt"
def header(grid, block, lds, extra_comment=""):
    return f"""; @launch grid=({grid},1,1) block=({block},1,1) lds={lds}
{extra_comment}.amdgcn_target "amdgcn-amd-amdhsa--gfx950"
.text
.globl {NAME}_kernel
.p2align 8
.type {NAME}_kernel,@function
{NAME}_kernel:
"""
def footer(nv=256, acc=256, ns=102):
    return f"""
.section .rodata,"a"
.p2align 6
.amdhsa_kernel {NAME}_kernel
  .amdhsa_next_free_vgpr {nv}
  .amdhsa_next_free_sgpr {ns}
  .amdhsa_accum_offset {acc}
  .amdhsa_group_segment_fixed_size 0
  .amdhsa_kernarg_size 136
  .amdhsa_user_sgpr_count 2
  .amdhsa_user_sgpr_kernarg_segment_ptr 1
  .amdhsa_system_sgpr_workgroup_id_x 1
.end_amdhsa_kernel
"""
```

```python
import numpy as np, os
from asmlib import *
def gen(kind, n, pf, path):
    body = f"""
s_cmp_ge_u32 s2, 256
s_cbranch_scc1 L_end
s_load_dwordx2 s[4:5], s[0:1], 128
"""
    if pf:
        body += f"""
s_getpc_b64 s[30:31]
v_lshlrev_b32 v10, {pf}, v0
v_mov_b32 v11, s31
v_add_co_u32 v10, vcc, s30, v10
s_nop 1
v_addc_co_u32 v11, vcc, 0, v11, vcc
global_load_dword v12, v[10:11], off
"""
        if pf==6:
            body += """v_add_co_u32 v10, vcc, 0x4000, v10
s_nop 1
v_addc_co_u32 v11, vcc, 0, v11, vcc
global_load_dword v13, v[10:11], off
"""
    body += f"""
s_waitcnt lgkmcnt(0)
s_mov_b32 s8, s4
s_mov_b32 s9, s5
s_mov_b32 s10, 0x100000
s_mov_b32 s11, 0x20000
s_waitcnt vmcnt(0)
s_barrier
s_memtime s[20:21]
s_waitcnt lgkmcnt(0)
"""
    for i in range(n):
        r = 8+2*(i%8)
        if kind=='v8': body += f"v_fma_f32 v{r}, v1, v2, v3\n"
        elif kind=='m44':
            if i%6<4: body += f"v_mfma_f32_32x32x16_bf16 v[{32+16*(i%6)}:{47+16*(i%6)}], v[24:27], v[28:31], v[{32+16*(i%6)}:{47+16*(i%6)}]\n"
            else: body += f"v_mfma_f32_4x4x4_16b_bf16 v[{8+4*(i%2)}:{11+4*(i%2)}], v[24:25], v[28:29], v[{8+4*(i%2)}:{11+4*(i%2)}]\n"
        elif kind=='m44b':
            j=i%6
            if j in (0,1,3,4):
                jj={0:0,1:1,3:2,4:3}[j]
                body += f"v_mfma_f32_32x32x16_bf16 v[{32+16*jj}:{47+16*jj}], v[24:27], v[28:31], v[{32+16*jj}:{47+16*jj}]\n"
            else: body += f"v_mfma_f32_4x4x4_16b_bf16 v[8:11], v[24:25], v[28:29], v[8:11]\n"
    body += """
s_memtime s[22:23]
s_waitcnt lgkmcnt(0)
s_sub_u32 s22, s22, s20
v_mov_b32 v8, s22
v_lshlrev_b32 v3, 2, v0
s_lshl_b32 s24, s2, 10
buffer_store_dword v8, v3, s[8:11], s24 offen
s_waitcnt vmcnt(0)
L_end:
s_endpgm
"""
    body += ".fill 1024, 4, 0xbf800000\n"
    open(path,"w").write(header(256,256,131072)+body+footer(128,128))
cfg = [('v8',4096,0),('v8',4096,7),('v8',4096,6),('m44',600,0),('m44b',600,0)]
for k_,n,pf in cfg: gen(k_, n, pf, f"mb7_{k_}_{pf}.s")
if os.path.exists('/dev/kfd'):
    from harness import *
    env = Env()
    for k_,n,pf in cfg:
        k,l = build(f"mb7_{k_}_{pf}.s")
        res=[]
        for cold in (True,True,True,False,False):
            t = env.run(k,l,cold=cold)
            w = env.get_ws(0, np.uint32, (256,256))[:,::64]
            res.append("%.2f/%.2f(%.1fus)"%(w.mean()/n, w.max()/n, t))
        print(k_, pf, "cyc/instr mean/max: first,cold,cold,warm,warm", res)
```

```python
import numpy as np, os
from asmlib import *
def gen(kind, path, nw=4):
    body = f"""
s_cmp_ge_u32 s2, 256
s_cbranch_scc1 L_end
s_load_dwordx2 s[4:5], s[0:1], 128
s_load_dwordx2 s[16:17], s[0:1], 0
s_waitcnt lgkmcnt(0)
s_mov_b32 s8, s4
s_mov_b32 s9, s5
s_mov_b32 s10, 0x100000
s_mov_b32 s11, 0x20000
s_mov_b32 s12, s16
s_mov_b32 s13, s17
s_mov_b32 s14, 2097152
s_mov_b32 s15, 0x20000
v_lshrrev_b32 v1, 6, v0
s_nop 0
v_readfirstlane_b32 s24, v1
v_and_b32 v2, 63, v0
v_lshlrev_b32 v3, 4, v2
v_lshlrev_b32 v4, 3, v2
s_and_b32 s25, s2, 7
s_lshl_b32 s25, s25, 18
s_lshl_b32 s26, s24, 15
s_add_u32 s25, s25, s26
s_lshl_b32 s26, s24, 12
s_mov_b32 m0, s26
s_barrier
s_memtime s[20:21]
s_waitcnt lgkmcnt(0)
"""
    M = lambda j: f"v_mfma_f32_32x32x16_bf16 v[{32+16*j}:{47+16*j}], v[24:27], v[28:31], v[{32+16*j}:{47+16*j}]\n"
    cnt=[0]
    def D():
        i=cnt[0]; cnt[0]+=1
        s = ""
        if i%4==0 : s += f"s_add_u32 s27, s25, {((i//4)%8)*4096}\n"
        m = int(kind.split('_')[1]) if '_' in kind else 0
        c = ' sc1' if 's' in kind.split('_')[0] else ''
        if m and (i // m) % 2: return s+f"buffer_load_dwordx4 v[{100+4*(i%6)}:{103+4*(i%6)}], v3, s[12:15], s27 offen offset:{1024*(i%4)}{c}\n"
        if 'reg' in kind: return s+f"buffer_load_dwordx4 v[{100+4*(i%6)}:{103+4*(i%6)}], v3, s[12:15], s27 offen offset:{1024*(i%4)}\n"
        return s+f"buffer_load_dwordx4 v3, s[12:15], s27 offen offset:{1024*(i%4)} lds\n"
    R = lambda i: f"ds_read_b64_tr_b16 v[{8+2*(i%6)}:{9+2*(i%6)}], v4 offset:{32768+512*i}\n"
    if 'split' in kind:
        body += "s_cmp_ge_u32 s24, 4\ns_cbranch_scc1 L_ld\n"
    for it in range(32):
        if kind.startswith('m'):
            body += M(0)+M(1)+M(2)+M(3)
        elif kind.startswith('d2'):
            body += M(0)+D()+M(1)+M(2)+D()+M(3)
        elif kind.startswith('d1'):
            body += M(0)+D()+M(1)+M(2)+M(3)
        elif kind.startswith('r2'):
            body += M(0)+R(0)+R(1)+R(2)+D()+M(1)+R(3)+R(4)+R(5)+M(2)+R(6)+R(7)+R(8)+D()+M(3)+"s_waitcnt lgkmcnt(0)\n"
        elif kind.startswith('r0') or kind.startswith('split'):
            body += M(0)+R(0)+R(1)+R(2)+M(1)+R(3)+R(4)+R(5)+M(2)+R(6)+R(7)+R(8)+M(3)+"s_waitcnt lgkmcnt(0)\n"
        elif kind.startswith('v2'):
            body += "".join(f"v_fma_f32 v{8+i%8}, v1, v2, v3\n" for i in range(13))+D()+"".join(f"v_fma_f32 v{8+i%8}, v1, v2, v3\n" for i in range(13))+D()
        elif kind.startswith('o2'):
            body += D()+D()
    if 'split' in kind:
        body += "s_branch L_fin\nL_ld:\n"
        for it in range(64): body += D()
        body += "L_fin:\n"
    body += """
s_memtime s[22:23]
s_waitcnt lgkmcnt(0)
s_waitcnt vmcnt(0)
s_memtime s[28:29]
s_waitcnt lgkmcnt(0)
s_sub_u32 s22, s22, s20
s_sub_u32 s28, s28, s20
v_mov_b32 v8, s22
v_mov_b32 v9, s28
v_lshlrev_b32 v3, 3, v0
s_lshl_b32 s24, s2, 12
buffer_store_dwordx2 v[8:9], v3, s[8:11], s24 offen
s_waitcnt vmcnt(0)
L_end:
s_endpgm
"""
    open(path,"w").write(header(256,64*nw,131072)+body+footer(128,128))
cfg = [(k,4) for k in ('d2','d2reg','d2_1','d2_4','d2_16','d2s_1','d2s_4','d2s_16')] ; old = [('m',4),('d1',4),('d2',4),('d2reg',4),('r0',4),('r2',4),('v2',4),('o2',4),('o2reg',4),('split',8)]
for k_,nw in cfg: gen(k_, f"mb12_{k_}.s", nw)
if os.path.exists('/dev/kfd'):
    from harness import *
    env = Env()
    for k_,nw in cfg:
        k,l = build(f"mb12_{k_}.s")
        for cold in (False,False,False): t = env.run(k,l,cold=cold)
        w = env.get_ws(0, np.uint32, (256,512,2))[:,:64*nw:64,:]
        print(k_, "cyc/iter issue-end per wave", (w[:,:,0].mean(0)/32).round(1), "drained", (w[:,:,1].mean(0)/32).round(1))
```
